```python
import torch

def _softmax(x, axis=-1):
    return torch.softmax(x, dim=axis)

def _gelu(x):
    return torch.nn.functional.gelu(x, approximate='tanh')

def _silu(x):
    return torch.nn.functional.silu(x)

def _sigmoid(x):
    return torch.sigmoid(x)

def _layernorm(x, axis=-1, eps=1e-05):
    m = x.mean(dim=axis, keepdim=True)
    v = x.var(dim=axis, keepdim=True, unbiased=False)
    return (x - m) / torch.sqrt(v + eps)

def _scatter_add(tgt, idx, src, axis=0):
    return tgt.clone().index_add_(axis, idx, src)

def _segment_sum(src, seg, n):
    out = torch.zeros((n,) + src.shape[1:], dtype=src.dtype)
    return out.index_add_(0, seg, src)

def _pad(x, pw):
    flat = tuple((v for pair in reversed(pw) for v in pair))
    return torch.nn.functional.pad(x, flat)
kernel_name = 'adaLN_cond__mha_block_cached__geglu_ffn__prompt'

def setup_inputs():

    _w = lambda a: (lambda t: t.to(torch.bfloat16) if t.is_floating_point() else t)(torch.as_tensor(a))

    def _A_setup():
        B, Sq, D = (1, 2048, 1024)
        H, Sk, Dh = (32, 2048, 128)
        return {'x': _w((lambda *s: torch.randn(*s, dtype=torch.bfloat16) * 0.05)(B, Sq, D)), 'k_cache': _w((lambda *s: torch.randn(*s, dtype=torch.bfloat16) * 3.2)(B, H, Sk, Dh)), 'v_cache': _w((lambda *s: torch.randn(*s, dtype=torch.bfloat16) * 0.4)(B, H, Sk, Dh)), 'wq': _w((lambda *s: torch.randn(*s, dtype=torch.bfloat16) * 3.2)(D, H * Dh) * D ** (-0.5)), 'wo': _w((lambda *s: torch.randn(*s, dtype=torch.bfloat16) * 0.4)(H * Dh, D) * (H * Dh) ** (-0.5))}
    _A_in = _A_setup()

    def _B_setup():
        B, S, D, F = (1, 2048, 1024, 3584)
        return {'x': _w((lambda *s: torch.randn(*s, dtype=torch.bfloat16) * 0.05)(B, S, D)), 'w_gate': _w((lambda *s: torch.randn(*s, dtype=torch.bfloat16) * 0.05)(D, F)), 'w_up': _w((lambda *s: torch.randn(*s, dtype=torch.bfloat16) * 0.05)(D, F)), 'w_down': _w((lambda *s: torch.randn(*s, dtype=torch.bfloat16) * 0.05)(F, D))}
    _B_in = _B_setup()
    return {'A_x': _A_in['x'], 'A_k_cache': _A_in['k_cache'], 'A_v_cache': _A_in['v_cache'], 'A_wq': _A_in['wq'], 'A_wo': _A_in['wo'], 'B_x': _B_in['x'], 'B_w_gate': _B_in['w_gate'], 'B_w_up': _B_in['w_up'], 'B_w_down': _B_in['w_down'], 'c': _w((lambda *s: torch.randn(*s, dtype=torch.bfloat16) * 0.1)(1, 1024) * 8.0), 'w_mod': _w((lambda *s: torch.randn(*s, dtype=torch.bfloat16) * 0.1)(1024, 6 * 1024) * 1024 ** (-0.5) * 8.0)}

def reference(A_x, A_k_cache, A_v_cache, A_wq, A_wo, B_x, B_w_gate, B_w_up, B_w_down, c, w_mod):

    def _A_ref(x, k_cache, v_cache, wq, wo):
        B, Sq, D = x.shape
        H, Dh = (32, 128)
        q = (lambda x, *d: x.permute(*d))((x @ wq).reshape(B, Sq, H, Dh), 0, 2, 1, 3)
        scores = torch.einsum('bhqd,bhkd->bhqk', q, k_cache) * Dh ** (-0.5)
        p = _softmax(scores, axis=-1)
        o = torch.einsum('bhqk,bhkd->bhqd', p, v_cache)
        return (lambda x, *d: x.permute(*d))(o, 0, 2, 1, 3).reshape(B, Sq, H * Dh) @ wo

    def _B_ref(x, w_gate, w_up, w_down):
        return _gelu(x @ w_gate) * (x @ w_up) @ w_down
    x = A_x
    mod = (_silu(c) @ w_mod).reshape(c.shape[0], 6, 1, -1)
    sa, ca, ga, sb, cb, gb = (mod[:, 0].clone(), mod[:, 1].clone(), mod[:, 2].clone(), mod[:, 3].clone(), mod[:, 4].clone(), mod[:, 5].clone())
    h = _layernorm(x, axis=-1) * (1 + ca) + sa
    x = x + ga * _A_ref(h, A_k_cache, A_v_cache, A_wq, A_wo)
    h = _layernorm(x, axis=-1) * (1 + cb) + sb
    x = x + gb * _B_ref(h, B_w_gate, B_w_up, B_w_down)
    return x
```

```python
import re

class Op:
    __slots__ = ('text', 'tag', 'kind', 'wait', 'mark')
    def __init__(self, text, tag=None, kind=None, wait=None, mark=None):
        self.text = text; self.tag = tag; self.kind = kind; self.wait = wait; self.mark = mark
    def __repr__(self):
        return self.text

def classify(text):
    op = text.split()[0]
    if op.endswith(':'): return 'label'
    if op.startswith('v_mfma'): return 'mfma'
    if op.startswith('ds_'): return 'ds'
    if op.startswith('buffer_') or op.startswith('global_'): return 'vmem'
    if op.startswith('s_load') or op.startswith('s_memtime') or op.startswith('s_memrealtime') or op.startswith('s_buffer_load'): return 'smem'
    if op == 's_waitcnt': return 'wait'
    if op == 's_barrier': return 'barrier'
    if op.startswith('s_cbranch') or op == 's_branch' or op == 's_endpgm': return 'branch'
    if op == 's_nop': return 'nop'
    if op.startswith('s_'): return 'salu'
    if op.startswith('v_'): return 'valu'
    if op.startswith('.') or op.startswith(';'): return 'dir'
    raise ValueError('cannot classify ' + text)

class Stream:
    def __init__(self):
        self.ops = []
    def __call__(self, text, tag=None):
        for line in text.split('\n'):
            line = line.strip()
            if not line: continue
            self.ops.append(Op(line, tag=tag, kind=classify(line)))
    def wait(self, vm=None, lgkm=None):
        self.ops.append(Op('WAIT', kind='wait', wait=(vm, lgkm)))
    def mark(self, m):
        self.ops.append(Op('; mark %s' % (m,), kind='dir', mark=m))
    def extend(self, other):
        self.ops.extend(other.ops)

def resolve_waits(ops, drop_redundant=True):
    vmq = []
    lgq = []
    out = []
    for o in ops:
        if o.kind == 'vmem':
            if o.text.startswith('buffer_wbl2') or o.text.startswith('buffer_inv'):
                vmq.append(o.tag)
            else:
                vmq.append(o.tag)
            out.append(o)
        elif o.kind == 'ds':
            lgq.append(o.tag); out.append(o)
        elif o.kind == 'smem':
            lgq.append('__smem__'); out.append(o)
        elif o.kind == 'wait' and o.wait is not None:
            vm, lg = o.wait
            parts = []
            if vm is not None:
                if vm == 'all':
                    n = 0
                else:
                    vm = set(vm) if isinstance(vm, (list, tuple, set)) else {vm}
                    idx = [i for i, t in enumerate(vmq) if t in vm]
                    n = (len(vmq) - 1 - max(idx)) if idx else None
                if n is not None and (n < len(vmq)):
                    assert n <= 63, 'vmcnt overflow %d' % n
                    parts.append('vmcnt(%d)' % n)
                    vmq = vmq[len(vmq) - n:] if n else []
            if lg is not None:
                if lg == 'all':
                    n = 0
                else:
                    lg = set(lg) if isinstance(lg, (list, tuple, set)) else {lg}
                    idx = [i for i, t in enumerate(lgq) if t in lg]
                    n = (len(lgq) - 1 - max(idx)) if idx else None
                    if n is not None and '__smem__' in lgq: n = 0
                if n is not None and (n < len(lgq)):
                    if n > 15: n = 15
                    parts.append('lgkmcnt(%d)' % n)
                    lgq = lgq[len(lgq) - n:] if n else []
            if parts:
                out.append(Op('s_waitcnt ' + ' '.join(parts), kind='wait'))
        elif o.kind == 'wait':
            m = re.search(r'vmcnt\((\d+)\)', o.text)
            if m:
                n = int(m.group(1)); vmq = vmq[len(vmq) - n:] if n and n < len(vmq) else ([] if n == 0 else vmq)
            m = re.search(r'lgkmcnt\((\d+)\)', o.text)
            if m:
                n = int(m.group(1)); lgq = lgq[len(lgq) - n:] if n and n < len(lgq) else ([] if n == 0 else lgq)
            out.append(o)
        else:
            out.append(o)
        assert len(vmq) <= 63, 'too many outstanding vmem ops (%d) at %s' % (len(vmq), o.text)
    return out

def split_marks(ops):
    segs = []; cur = []; curm = None
    for o in ops:
        if o.mark is not None:
            segs.append((curm, cur)); cur = []; curm = o.mark
        else:
            cur.append(o)
    segs.append((curm, cur))
    return segs

def roll(ops, first, period, count, label, counter_sgpr):
    segs = split_marks(ops)
    idx = {m: i for i, (m, _) in enumerate(segs)}
    i0 = idx[('st', first)]
    def body(k):
        r = []
        for t in range(first + k * period, first + (k + 1) * period):
            r += [o.text for o in segs[idx[('st', t)]][1]]
        return r
    b0 = body(0)
    for k in range(1, count):
        bk = body(k)
        if bk != b0:
            for a, b in zip(b0, bk):
                if a != b:
                    raise AssertionError('not periodic at iter %d: %r vs %r' % (k, a, b))
            raise AssertionError('not periodic (len) at iter %d: %d vs %d' % (k, len(b0), len(bk)))
    out = []
    for m, s in segs[:i0]:
        out += [o.text for o in s]
    out.append('s_mov_b32 s%d, %d' % (counter_sgpr, count))
    out.append('.p2align 6')
    out.append(label + ':')
    out += b0
    out.append('s_sub_u32 s%d, s%d, 1' % (counter_sgpr, counter_sgpr))
    out.append('s_cmp_lg_u32 s%d, 0' % counter_sgpr)
    out.append('s_cbranch_scc1 ' + label)
    last = first + period * count
    rest = [i for i, (m, _) in enumerate(segs) if i >= i0 + period * count]
    for i in rest:
        out += [o.text for o in segs[i][1]]
    return out

_REG = re.compile(r'\b([vas])(\d+)\b|\b([vas])\[(\d+):(\d+)\]|\b(vcc|exec|m0|scc)\b')

def regs_of(operand):
    r = set()
    for m in _REG.finditer(operand):
        if m.group(1): r.add((m.group(1), int(m.group(2))))
        elif m.group(3):
            for i in range(int(m.group(4)), int(m.group(5)) + 1): r.add((m.group(3), i))
        else: r.add((m.group(6), 0))
    return r

TRANS = ('v_exp_f32', 'v_log_f32', 'v_rcp_f32', 'v_rsq_f32', 'v_sqrt_f32', 'v_sin_f32', 'v_cos_f32')

def parse(text):
    text = text.split(';')[0].strip()
    kind = classify(text)
    parts = text.split(None, 1)
    op = parts[0]
    rest = parts[1] if len(parts) > 1 else ''
    opnds = [x.strip() for x in rest.split(',')] if rest else []
    dst = set(); src = set(); ex = {}
    if kind == 'mfma':
        dst = regs_of(opnds[0]); ex['a'] = regs_of(opnds[1]); ex['b'] = regs_of(opnds[2]); ex['c'] = regs_of(opnds[3])
        src = ex['a'] | ex['b'] | ex['c']
        ex['passes'] = 8 if '32x32' in op else 4
    elif kind == 'valu':
        base = op.replace('_e32', '').replace('_e64', '')
        if base.startswith('v_cmp'):
            dst = regs_of(opnds[0]); src = set().union(*[regs_of(x) for x in opnds[1:]])
            if base.startswith('v_cmpx'): dst |= {('exec', 0)}
        elif base in ('v_permlane32_swap_b32', 'v_permlane16_swap_b32', 'v_swap_b32'):
            dst = regs_of(opnds[0]) | regs_of(opnds[1]); src = set(dst)
        elif base in ('v_add_co_u32', 'v_sub_co_u32', 'v_addc_co_u32', 'v_subb_co_u32'):
            dst = regs_of(opnds[0]) | regs_of(opnds[1]); src = set().union(*[regs_of(x) for x in opnds[2:]])
        else:
            dst = regs_of(opnds[0]); src = set().union(*[regs_of(x) for x in opnds[1:]]) if len(opnds) > 1 else set()
            if base.startswith('v_fmac') or base.startswith('v_dot2c') or 'dpp' in text or 'row_' in text: src |= dst
            if base.startswith('v_cndmask') and len(opnds) == 3: src |= {('vcc', 0)}
        ex['trans'] = base in TRANS
        ex['dpp'] = ('row_' in text or 'quad_perm' in text or 'wave_' in text)
        ex['perm'] = base.startswith('v_permlane')
        ex['rl'] = base in ('v_readfirstlane_b32', 'v_readlane_b32')
    elif kind == 'ds':
        if op.startswith('ds_read') or op.startswith('ds_bpermute') or op.startswith('ds_permute') or op.startswith('ds_swizzle'):
            dst = regs_of(opnds[0]); src = set().union(*[regs_of(x) for x in opnds[1:]])
        else:
            src = set().union(*[regs_of(x) for x in opnds])
    elif kind == 'vmem':
        if op in ('buffer_wbl2', 'buffer_inv'):
            pass
        elif ' lds' in text or 'load_lds' in op:
            src = set().union(*[regs_of(x) for x in opnds]) | {('m0', 0)}
            ex['lds'] = True
        elif 'load' in op:
            dst = regs_of(opnds[0]); src = set().union(*[regs_of(x) for x in opnds[1:]])
        else:
            src = set().union(*[regs_of(x) for x in opnds])
            if op.startswith('buffer_store') or op.startswith('buffer_atomic'): ex['data'] = regs_of(opnds[0])
            else: ex['data'] = regs_of(opnds[1])
            ex['wide'] = ('x3' in op or 'x4' in op)
            if 'atomic' in op and ' sc0' in text: dst = ex['data']
    elif kind in ('salu', 'smem'):
        if op.startswith('s_cmp') or op in ('s_setprio', 's_sleep', 's_bitcmp0_b32', 's_bitcmp1_b32'):
            src = set().union(*[regs_of(x) for x in opnds]) if opnds else set()
        else:
            dst = regs_of(opnds[0]) if opnds else set(); src = set().union(*[regs_of(x) for x in opnds[1:]]) if len(opnds) > 1 else set()
            if 'saveexec' in op: dst |= {('exec', 0)}
    return op, kind, dst, src, ex

def check_hazards(lines, name=''):
    ins = []
    for t in lines:
        t0 = t.split(';')[0].strip()
        if not t0: continue
        k = classify(t0)
        if k in ('label', 'dir'): continue
        ins.append((t0,) + parse(t0))
    pos = []
    c = 0
    for (t, op, kind, d, s, ex) in ins:
        pos.append(c)
        if kind == 'nop': c += int(t.split()[1], 0) + 1
        else: c += 1
    probs = []
    n = len(ins)
    W = 24
    for j in range(n):
        tj, opj, kj, dj, sj, exj = ins[j]
        for i in range(j - 1, max(-1, j - W - 1), -1):
            ti, opi, ki, di, si, exi = ins[i]
            dist = pos[j] - pos[i] - (1 if ki != 'nop' else 0)
            if ki == 'nop': continue
            if dist >= 20: break
            if ki == 'mfma':
                mids = [q for q in range(i + 1, j) if ins[q][2] == 'mfma']
                if len(mids) >= 2:
                    dist = max(dist, sum(ins[q][5]['passes'] for q in [i] + mids[:-1]) + (pos[j] - pos[mids[-1]] - 1))
            need = 0; why = ''
            def vreg(S): return {r for r in S if r[0] in 'va'}
            def sreg(S): return {r for r in S if r[0] in ('s', 'vcc')}
            if ki == 'valu' and kj == 'mfma' and vreg(di) & sj: need, why = 2, 'valu->mfma src'
            if ki == 'mfma':
                p = exi['passes']
                if kj == 'mfma':
                    if di & (exj['a'] | exj['b']): need, why = (12 if p == 8 else 8), 'mfma D->mfma A/B'
                    elif di & exj['c'] and not (di == exj['c'] and p == exj['passes']): need, why = (10 if p == 8 else 6), 'mfma D->mfma C overlap'
                    elif di & dj and not (di == exj['c']): need, why = (12 if p == 8 else 8), 'mfma D->mfma D WAW(conservative)'
                elif kj in ('valu', 'ds', 'vmem'):
                    if di & (sj | dj): need, why = (12 if p == 8 else 8), 'mfma D->valu/mem'
                    if kj == 'valu' and exi['c'] & dj and not need: need, why = (7 if p == 8 else 3), 'mfma C WAR'
            if ki == 'valu':
                if exi.get('trans') and kj == 'valu' and not exj.get('trans') and di & sj: need, why = max(need, 1), 'trans->valu'
                if exi.get('trans') and kj in ('mfma',) and di & sj: need, why = max(need, 2), 'trans->mfma'
                if kj == 'valu' and exj.get('perm') and vreg(di) & sj: need, why = max(need, 2), 'valu->permlane'
                if kj == 'valu' and exj.get('dpp') and vreg(di) & sj: need, why = max(need, 2), 'valu->dpp'
                if kj == 'valu' and exj.get('rl') and vreg(di) & sj: need, why = max(need, 1), 'valu->readlane'
                if kj == 'valu' and sreg(di) & sj: need, why = max(need, 2), 'valu sgpr->valu'
                if kj == 'vmem' and sreg(di) & sj: need, why = max(need, 5), 'valu sgpr->vmem'
                if ('exec', 0) in di and kj == 'mfma': need, why = max(need, 4), 'valu exec->mfma'
            if ki == 'salu' and ('m0', 0) in di and kj == 'vmem' and exj.get('lds'): need, why = max(need, 1), 'm0->ldsdma'
            if ki == 'vmem' and exi.get('wide') and exi.get('data') and (exi['data'] & dj): need, why = max(need, 2 if kj == 'valu' else 1), 'wide store WAR'
            if need > dist:
                probs.append('%s: [%s] need %d have %d:\n    %s\n    %s' % (name, why, need, dist, ti, tj))
    return probs

def kernel_text(name, lines, vgpr=512, sgpr=96, accum=256):
    out = []
    out.append('.text')
    out.append('.globl %s' % name)
    out.append('.p2align 8')
    out.append('.type %s,@function' % name)
    out.append('%s:' % name)
    out += lines
    return out

def kernel_desc(name, vgpr=512, sgpr=96, accum=256):
    return ['.p2align 6',
            '.amdhsa_kernel %s' % name,
            '  .amdhsa_next_free_vgpr %d' % vgpr,
            '  .amdhsa_next_free_sgpr %d' % sgpr,
            '  .amdhsa_accum_offset %d' % accum,
            '  .amdhsa_group_segment_fixed_size 0',
            '  .amdhsa_kernarg_size 112',
            '  .amdhsa_user_sgpr_count 2',
            '  .amdhsa_user_sgpr_kernarg_segment_ptr 1',
            '  .amdhsa_system_sgpr_workgroup_id_x 1',
            '  .amdhsa_float_denorm_mode_32 3',
            '  .amdhsa_float_denorm_mode_16_64 3',
            '.end_amdhsa_kernel']
```

```python
import math, struct
from fw import *

KA = dict(x=0, kc=8, vc=16, wq=24, wo=32, bx=40, wg=48, wu=56, wd=64, c=72, wmod=80, out=88, dbg=96, ws=104)
WS_H = 1 << 20
WS_O = 8 << 20
LOG2E = 1.4426950408889634
THRESH = 48.0

def f2u(f): return struct.unpack('<I', struct.pack('<f', f))[0]
def hx(f): return '0x%08x' % f2u(f)

def srd(A, d, p, nbytes, off=0):
    if off:
        A(f's_add_u32 s{d}, s{p}, {off}')
        A(f's_addc_u32 s{d+1}, s{p+1}, 0')
        A(f's_and_b32 s{d+1}, s{d+1}, 0xffff')
    else:
        A(f's_mov_b32 s{d}, s{p}')
        A(f's_and_b32 s{d+1}, s{p+1}, 0xffff')
    A(f's_mov_b32 s{d+2}, {nbytes}')
    A(f's_mov_b32 s{d+3}, 0x20000')

def cost_of(text):
    op = text.split()[0]
    if op in TRANS: return 8
    return 4

def k_attn(mode='pre', NTILES=32):
    name = 'attn'
    R0 = 3; RN = (NTILES - 5 - R0) // 4
    pre = (mode == 'pre')
    def SB(buf, qb, kt): return buf * 64 + qb * 32 + kt * 16
    NM = lambda qb: 128 + 16 * qb
    LS = lambda qb, i: 160 + 2 * qb + i
    KRA = 164
    VRA = 172
    KDM = 176
    VDM = 180
    WDM = 181
    LO = 185
    LANE = 186
    MQ = lambda qb: 187 + qb
    MX = 189
    FS = lambda qb: 190 + qb
    T = 192
    OA = lambda qb, dt: qb * 64 + dt * 16
    QF = lambda qb, ds: 128 + qb * 32 + ds * 4
    FR = 192
    NFR = 8; LA = 6
    KBASE = 0; VBASE = 65536; WBASE = 98304
    cscale = LOG2E / math.sqrt(128.0)
    A = Stream()
    A('s_cmp_ge_u32 s2, 256')
    A('s_cbranch_scc1 L_attn_end')
    A(f's_load_dwordx4 s[4:7], s[0:1], {KA["kc"]}')
    A(f's_load_dwordx2 s[8:9], s[0:1], {KA["wq"]}')
    A(f's_load_dwordx2 s[10:11], s[0:1], {KA["ws"]}')
    A(f'v_and_b32 v{LANE}, 63, v0')
    A(f'v_lshrrev_b32 v{T}, 6, v0')
    A(f'v_lshlrev_b32 v{LO}, 4, v{LANE}')
    A(f'v_readfirstlane_b32 s33, v{T}')
    A('s_and_b32 s30, s2, 7'); A('s_lshr_b32 s31, s2, 3')
    A('s_lshl_b32 s34, s30, 2'); A('s_lshr_b32 s36, s31, 3'); A('s_add_u32 s34, s34, s36')
    A('s_and_b32 s35, s31, 7')
    A('s_lshl_b32 s37, s35, 3'); A('s_lshl_b32 s36, s33, 1'); A('s_add_u32 s37, s37, s36')
    A('s_lshl_b32 s40, s37, 16'); A('s_add_u32 s41, s40, 65536')
    A('s_lshl_b32 s42, s34, 8'); A('s_lshl_b32 s36, s33, 17'); A('s_add_u32 s42, s42, s36')
    A('s_lshl_b32 s43, s33, 12')
    A('s_lshl_b32 s44, s34, 19'); A('s_add_u32 s44, s44, s43')
    A('s_mov_b32 s45, s44')
    A('s_lshl_b32 s47, s37, 18'); A('s_lshl_b32 s36, s34, 13'); A('s_add_u32 s47, s47, s36')
    A(f'v_lshrrev_b32 v{T}, 4, v{LANE}')
    A(f'v_and_b32 v{T+1}, 15, v{LANE}')
    for i in range(4):
        A(f'v_or_b32 v{T+2}, {4*i}, v{T}')
        A(f'v_xor_b32 v{T+2}, v{T+2}, v{T+1}')
        A(f'v_lshlrev_b32 v{T+2}, 4, v{T+2}')
        A(f'v_lshl_add_u32 v{KDM+i}, v{T}, 8, v{T+2}')
    A(f'v_lshlrev_b32 v{T+2}, 2, v{T}')
    A(f'v_xor_b32 v{T+2}, v{T+2}, v{T+1}')
    A(f'v_lshlrev_b32 v{T+2}, 4, v{T+2}')
    A(f'v_lshl_add_u32 v{VDM}, v{T}, 8, v{T+2}')
    A(f'v_lshl_add_u32 v{WDM}, v{T}, 13, v{T+2}')
    for i in range(1, 4):
        A(f'v_add_u32 v{WDM+i}, {i*(4*8192-1024)}, v{WDM}')
    A(f'v_and_b32 v{T}, 31, v{LANE}')
    A(f'v_lshrrev_b32 v{T+1}, 5, v{LANE}')
    A(f'v_and_b32 v{T+2}, 15, v{LANE}')
    A(f'v_xor_b32 v{T+2}, v{T+2}, v{T+1}')
    for ds in range(8):
        A(f'v_xor_b32 v{T+3}, {2*ds}, v{T+2}')
        A(f'v_lshlrev_b32 v{T+3}, 4, v{T+3}')
        A(f'v_lshl_add_u32 v{KRA+ds}, v{T}, 8, v{T+3}')
    def tr_addrs(hfmul_shift, base):
        A(f'v_lshrrev_b32 v{T+1}, 5, v{LANE}')
        A(f'v_bfe_u32 v{T+4}, v{LANE}, 4, 1')
        A(f'v_bfe_u32 v{T+5}, v{LANE}, 2, 2')
        A(f'v_and_b32 v{T+6}, 1, v{LANE}')
        A(f'v_lshlrev_b32 v{T+6}, 4, v{T+6}')
        A(f'v_bfe_u32 v{T+7}, v{LANE}, 1, 1')
        A(f'v_lshl_add_u32 v{T+6}, v{T+7}, 3, v{T+6}')
        A(f'v_lshl_add_u32 v{T+7}, v{T+1}, {hfmul_shift}, v{T+5}')
        A(f'v_lshlrev_b32 v{T+7}, 8, v{T+7}')
        A(f'v_lshl_add_u32 v{T+7}, v{T+4}, 5, v{T+7}')
        A(f'v_add_u32 v{T+7}, v{T+7}, v{T+6}')
        A(f'v_add_u32 v{T+7}, {base}, v{T+7}')
        for t in range(4):
            A(f'v_xor_b32 v{T+8}, {t}, v{T+5}')
            A(f'v_lshl_add_u32 v{VRA+t}, v{T+8}, 6, v{T+7}')
    tr_addrs(3, WBASE)
    A.wait(lgkm='all')
    srd(A, 12, 4, 32 * 2048 * 128 * 2)
    srd(A, 16, 6, 32 * 2048 * 128 * 2)
    srd(A, 20, 8, 1024 * 4096 * 2)
    srd(A, 24, 10, 2048 * 1024 * 2, WS_H)
    srd(A, 48, 10, 2048 * 4096 * 2, WS_O)
    KS = 4; NS = 16; S = 4; RB = 8; RA = 2; nsteps = 64
    QA = lambda qb, dt: qb * 64 + dt * 16
    BF = 0
    def tokload(gs, b):
        r = BF + ((gs % RB) * 2 + b) * 4
        A(f'buffer_load_dwordx4 a[{r}:{r+3}], v{LO}, s[24:27], s{40+b} offen offset:{(gs%4)*1024}', tag=('tok', gs))
        if gs % 4 == 3: A(f's_add_u32 s{40+b}, s{40+b}, 4096')
    def wdma(st, i):
        if i == 0:
            A(f's_add_u32 m0, s43, {WBASE + (st % S) * 16384}')
            A('s_nop 0')
        A(f'buffer_load_dwordx4 v{WDM+i}, s[20:23], s42 offen offset:{1024*i} lds', tag=('wdma', st))
        if i == 3: A(f's_add_u32 s42, s42, {64*8192}')
    def kdma(X, j, i, nop=True):
        if i == 0:
            X(f's_add_u32 m0, s43, {KBASE + (j % 4) * 16384}')
            if nop: X('s_nop 0')
        X(f'buffer_load_dwordx4 v{KDM+i}, s[12:15], s44 offen offset:{1024*i} lds', tag=('kdma', j))
        if i == 3: X('s_add_u32 s44, s44, 16384')
    def vdma(X, j, i, nop=True):
        if i == 0:
            X(f's_add_u32 m0, s43, {VBASE + (j % 4) * 16384}')
            if nop: X('s_nop 0')
        X(f'buffer_load_dwordx4 v{VDM}, s[16:19], s45 offen offset:{1024*i} lds', tag=('vdma', j))
        if i == 3: X('s_add_u32 s45, s45, 16384')
    def wread(gs, t, j):
        st = gs // KS; s = gs % KS
        off = (st % S) * 16384 + (16 * s + 4 * j) * 256
        r = FR + ((gs % RA) * 4 + t) * 4 + 2 * j
        A(f'ds_read_b64_tr_b16 a[{r}:{r+1}], v{VRA+t} offset:{off}', tag=('w', gs, t))
    for st in range(S - 1):
        for i in range(4): wdma(st, i)
        if st < RB // KS:
            for s in range(KS):
                for b in range(2): tokload(st * KS + s, b)
    for e in range(128):
        A(f'v_mov_b32 v{e}, 0')
    A.wait(vm=[('wdma', 0)])
    A('s_barrier')
    for gs in range(RA):
        for t in range(4):
            for j in range(2):
                if not (gs == RA - 1 and t == 3 and j == 1): wread(gs, t, j)
    for st in range(NS):
        A.mark(('st', st))
        for s in range(KS):
            gs = st * KS + s
            for t in range(4):
                for b in range(2):
                    if b == 0:
                        A.wait(vm=[('tok', gs)] if t == 0 else None, lgkm=[('w', gs, t)])
                    acc = QA(b, t)
                    ra = FR + ((gs % RA) * 4 + t) * 4
                    rb = BF + ((gs % RB) * 2 + b) * 4
                    A(f'v_mfma_f32_32x32x16_bf16 v[{acc}:{acc+15}], a[{ra}:{ra+3}], a[{rb}:{rb+3}], v[{acc}:{acc+15}]')
                    if t == 0 and b == 0:
                        if gs + RA - 1 < nsteps: wread(gs + RA - 1, 3, 1)
                    elif b == 0:
                        if gs + RA < nsteps: wread(gs + RA, t - 1, 1)
                    else:
                        if t == 0 and s == KS - RA and st + 1 < NS:
                            A.wait(vm=[('wdma', st + 1)])
                            A('s_barrier')
                        if gs + RA < nsteps: wread(gs + RA, t, 0)
                    if t == 1 and gs >= 1 and gs - 1 + RB < nsteps: tokload(gs - 1 + RB, b)
                    if b == 1 and t in (2, 3) and s >= KS - RA:
                        i = (s - (KS - RA)) * 2 + (t - 2)
                        if st + S - 1 < NS: wdma(st + S - 1, i)
                        elif st == NS - 3: kdma(A, 0, i)
                        elif st == NS - 2: vdma(A, 0, i)
                        elif st == NS - 1: kdma(A, 1, i)
    A.mark(('qepi', 0))
    for i in range(4): kdma(A, 2, i)
    for i in range(4): vdma(A, 1, i)
    for i in range(4): kdma(A, 3, i)
    tr_addrs(2, VBASE)
    A(f's_mov_b32 s62, {hx(cscale)}')
    A(f's_mov_b32 s63, {hx(THRESH)}')
    A(f's_mov_b32 s64, {hx(1.0/math.sqrt(128.0))}')
    A(f's_mov_b32 s65, {hx(LOG2E)}')
    A('s_mov_b32 s54, 0')
    for qb in range(2):
        for dt in range(4):
            for hh in range(2):
                r0 = QA(qb, dt) + 8 * hh
                if pre:
                    for e in range(8): A(f'v_cvt_pk_bf16_f32 v{r0+e}, 0, v{r0+e}')
                    for e in range(8): A(f'v_mul_f32 v{r0+e}, s62, v{r0+e}')
                for d in range(4): A(f'v_cvt_pk_bf16_f32 v{r0+d}, v{r0+2*d}, v{r0+2*d+1}')
                q = QF(qb, 2 * dt + hh)
                for d in range(4): A(f'v_accvgpr_write_b32 a{q+d}, v{r0+d}')
    for e in range(128):
        A(f'v_accvgpr_write_b32 a{e}, 0')
    for qb in range(2):
        for i in range(2): A(f'v_mov_b32 v{LS(qb,i)}, 0')
        for e in range(16 if pre else 1): A(f'v_mov_b32 v{NM(qb)+e}, 0')
    frags = []
    for kt in range(2):
        for ds in range(8): frags.append(('k', 0, kt, ds))
    for j in range(NTILES):
        if j + 1 < NTILES:
            for kt in range(2):
                for ds in range(8): frags.append(('k', j + 1, kt, ds))
        for u in range(4):
            for dt in range(4): frags.append(('v', j, u, dt))
    def frag_reads(f):
        kind, j, a, b = frags[f]
        r = FR + (f % NFR) * 4
        if kind == 'k':
            off = KBASE + (j % 4) * 16384 + a * 8192
            return [(f'ds_read_b128 a[{r}:{r+3}], v{KRA+b} offset:{off}', ('f', f))]
        res = []
        for jj in range(2):
            off = (j % 4) * 16384 + (16 * a + 8 * jj) * 256
            res.append((f'ds_read_b64_tr_b16 a[{r+2*jj}:{r+2*jj+1}], v{VRA+b} offset:{off}', ('f', f)))
        return res
    def mfma_text(f, qb):
        kind, j, a, b = frags[f]
        r = FR + (f % NFR) * 4
        if kind == 'k':
            d = SB(j % 2, qb, a)
            if b == 0:
                c = f'v[{NM(qb)}:{NM(qb)+15}]' if pre else '0'
            else:
                c = f'v[{d}:{d+15}]'
            q = QF(qb, b)
            return f'v_mfma_f32_32x32x16_bf16 v[{d}:{d+15}], a[{r}:{r+3}], a[{q}:{q+3}], {c}'
        p = SB(j % 2, qb, a // 2) + 8 * (a % 2)
        o = OA(qb, b)
        return f'v_mfma_f32_32x32x16_bf16 a[{o}:{o+15}], a[{r}:{r+3}], v[{p}:{p+3}], a[{o}:{o+15}]'
    nm = 2 * len(frags)
    fidx = {}
    for f, fr in enumerate(frags): fidx[fr] = f
    def mf_of(kind, j, a, b): return 2 * fidx[(kind, j, a, b)]
    fixed = [[] for _ in range(nm)]
    for f in range(LA, len(frags)):
        rd = frag_reads(f)
        g = 2 * (f - LA)
        for k, (t, tag) in enumerate(rd):
            fixed[g + k].append(('op', t, tag))
    for f in range(2, len(frags), 2):
        fixed[2 * f - 1].append(('wait', None, [('f', f), ('f', f + 1)]))
    iter_start = {}
    for j in range(NTILES):
        f0 = fidx[('k', j + 1, 0, 0)] if j + 1 < NTILES else fidx[('v', j, 0, 0)]
        iter_start[j] = 2 * f0
        g = 2 * (f0 - LA) - 1
        tags = [('vdma', j)] + ([('kdma', j + 1)] if j + 1 < NTILES else [])
        fixed[g].append(('wait', tags, 'all' if j == 0 else None))
        fixed[g].append(('op', 's_barrier', None))
        tmp = Stream()
        pieces = []
        if j + 4 < NTILES:
            for i in range(4):
                s0 = Stream(); kdma(s0, j + 4, i, nop=False); pieces.append(s0.ops)
        if j + 2 < NTILES:
            for i in range(4):
                s0 = Stream(); vdma(s0, j + 2, i, nop=False); pieces.append(s0.ops)
        gg = g + 2
        for pc in pieces:
            for o in pc:
                if 'm0' in o.text.split(',')[0]:
                    fixed[gg - 1].append(('op', o.text, None))
                elif o.kind == 'vmem':
                    fixed[gg].insert(0, ('op', o.text, o.tag))
                else:
                    fixed[gg + 1].append(('op', o.text, None))
            gg += 4
    vq = []
    INF = 10 ** 9
    def E_ops(j, u):
        kt, uu = u // 2, u % 2
        dl = mf_of('v', j, u, 0) - 2
        ops = []
        for qb in range(2):
            r0 = SB(j % 2, qb, kt) + 8 * uu
            seq = []
            pre_ops = []
            if mode == 'mimic':
                for e in range(8): pre_ops.append(f'v_cvt_pk_bf16_f32 v{r0+e}, 0, v{r0+e}')
                for e in range(8): pre_ops.append(f'v_mul_f32 v{r0+e}, s64, v{r0+e}')
                for e in range(8): pre_ops.append(f'v_cvt_pk_bf16_f32 v{r0+e}, 0, v{r0+e}')
                for e in range(8): pre_ops.append(f'v_fma_f32 v{r0+e}, v{r0+e}, s65, v{NM(qb)}')
            elif mode == 'fma':
                for e in range(8): pre_ops.append(f'v_fma_f32 v{r0+e}, v{r0+e}, s62, v{NM(qb)}')
            seq += pre_ops
            ex = [f'v_exp_f32 v{r0+e}, v{r0+e}' for e in range(8)]
            ad = [f'v_add_f32 v{LS(qb,e%2)}, v{LS(qb,e%2)}, v{r0+e}' for e in range(8)]
            cv = [f'v_cvt_pk_bf16_f32 v{r0+d}, v{r0+2*d}, v{r0+2*d+1}' for d in range(4)]
            seq += [ex[0], ex[1], ad[0], ex[2], ad[1], ex[3], cv[0], ad[2], ex[4], ad[3], ex[5], cv[1], ad[4], ex[6], ad[5], ex[7], cv[2], ad[6], ad[7], cv[3]]
            ops += seq
        return [(t, 0, dl, None) for t in ops]
    def M_ops(j, kt):
        last = mf_of('k', j, kt, 7) + 1
        ea = last + 3
        ops = []
        chains = []
        for qb in range(2):
            r0 = SB(j % 2, qb, kt)
            c = []
            if kt == 0:
                c.append(f'v_max3_f32 v{MQ(qb)}, v{r0}, v{r0+1}, v{r0+2}')
                for e in range(3, 15, 2): c.append(f'v_max3_f32 v{MQ(qb)}, v{MQ(qb)}, v{r0+e}, v{r0+e+1}')
                c.append(f'v_max_f32 v{MQ(qb)}, v{MQ(qb)}, v{r0+15}')
            else:
                for e in range(0, 16, 2): c.append(f'v_max3_f32 v{MQ(qb)}, v{MQ(qb)}, v{r0+e}, v{r0+e+1}')
            chains.append(c)
        for a, b in zip(*chains): ops += [a, b]
        if j == 0 and kt == 1:
            ea = last
            ops = ['s_nop 15'] + ops
        return [(t, ea, INF, None) for t in ops]
    def check_ops(j):
        dl = iter_start[j] - 1
        ops = []
        if pre:
            ops.append((f'v_max_f32 v{MX}, v{MQ(0)}, v{MQ(1)}', 0, dl, None))
        else:
            ops.append((f'v_fma_f32 v{MQ(0)}, v{MQ(0)}, s62, v{NM(0)}', 0, dl, None))
            ops.append((f'v_fma_f32 v{MQ(1)}, v{MQ(1)}, s62, v{NM(1)}', 0, dl, None))
            ops.append((f'v_max_f32 v{MX}, v{MQ(0)}, v{MQ(1)}', 0, dl, None))
        if j == 0:
            ops.append(('RARE1', 0, dl, ('force', j)))
        else:
            ops.append((f'v_cmp_lt_f32 vcc, s63, v{MX}', 0, dl, None))
            ops.append(('RARE1', 0, dl, ('cond', j)))
        return ops
    for j in range(NTILES):
        vq += M_ops(j, 0) + M_ops(j, 1) + check_ops(j)
        for u in range(4): vq += E_ops(j, u)
    def rare1_code(j, force):
        L = []
        L.append('s_nop 1')
        for qb in range(2):
            x, y = T, T + 1
            L.append(f'v_mov_b32 v{x}, v{MQ(qb)}')
            L.append(f'v_mov_b32 v{y}, v{MQ(qb)}')
            L.append('s_nop 1')
            L.append(f'v_permlane32_swap_b32 v{x}, v{y}')
            L.append('s_nop 1')
            L.append(f'v_max_f32 v{x}, v{x}, v{y}')
            if not force: L.append(f'v_max_f32 v{x}, 0, v{x}')
            if pre:
                for kt in range(2):
                    for e in range(16):
                        r = SB(j % 2, qb, kt) + e
                        L.append(f'v_sub_f32 v{r}, v{r}, v{x}')
                for e in range(16): L.append(f'v_sub_f32 v{NM(qb)+e}, v{NM(qb)+e}, v{x}')
            else:
                L.append(f'v_sub_f32 v{NM(qb)}, v{NM(qb)}, v{x}')
            if not force:
                L.append(f'v_exp_f32 v{FS(qb)}, -v{x}')
                L.append('s_nop 0')
                L.append(f'v_mul_f32 v{LS(qb,0)}, v{LS(qb,0)}, v{FS(qb)}')
                L.append(f'v_mul_f32 v{LS(qb,1)}, v{LS(qb,1)}, v{FS(qb)}')
        if not force: L.append('s_mov_b32 s54, 1')
        L.append('s_nop 1')
        return L
    def rare2_code():
        L = ['s_nop 15', 's_nop 3']
        for qb in range(2):
            for e0 in range(0, 64, 8):
                for e in range(8): L.append(f'v_accvgpr_read_b32 v{T+e}, a{qb*64+e0+e}')
                for e in range(8): L.append(f'v_mul_f32 v{T+e}, v{T+e}, v{FS(qb)}')
                for e in range(8): L.append(f'v_accvgpr_write_b32 a{qb*64+e0+e}, v{T+e}')
        L.append('s_mov_b32 s54, 0')
        L.append('s_nop 3')
        return L
    def fixed_cost(g):
        c = 0
        for it in fixed[g]:
            if it[0] == 'op' and it[1].startswith('buffer_load'): c += 12
            else: c += 4
        return c
    per_iter = sum(cost_of(t[0]) for t in (M_ops(1, 0) + M_ops(1, 1) + check_ops(1) + sum([E_ops(1, u) for u in range(4)], [])))
    g0 = iter_start[4]
    bud_iter = sum(min(24, 28 - fixed_cost(g)) for g in range(g0, g0 + 64))
    extra = 0
    while bud_iter + 64 * extra < per_iter * 1.04: extra += 1
    print(f'attn[{mode}]: valu/iter {per_iter} budget {bud_iter} extra/gap {extra}')
    A.wait(vm=[('kdma', 0)])
    A('s_barrier')
    for f in range(LA):
        for (t, tag) in frag_reads(f): A(t, tag=tag)
    A.wait(lgkm=[('f', 0), ('f', 1)])
    qi = 0
    rares = {}
    start_of = {v: k for k, v in iter_start.items()}
    carry = 0
    for g in range(nm):
        if g in start_of:
            j = start_of[g]
            A.mark(('st', 100 + j))
            if j >= 1:
                lab = f'L_r2_{j%4 if R0 <= j < R0+4*RN else j+100}'
                A('s_cmp_lg_u32 s54, 0')
                A(f's_cbranch_scc1 {lab}')
                A(f'{lab}_ret:')
                rares[lab] = ['s_call_b64 s[60:61], L_rare2', f's_branch {lab}_ret']
        f, qb = g // 2, g % 2
        A(mfma_text(f, qb))
        for it in fixed[g]:
            if it[0] == 'op': A(it[1], tag=it[2])
            else: A.wait(vm=it[1], lgkm=it[2])
        bud = min(24, 28 - fixed_cost(g)) + extra + carry
        carry = 0
        while qi < len(vq):
            t, ea, dl, sp = vq[qi]
            if ea > g: break
            c = cost_of(t)
            due = any(vq[k][2] <= g for k in range(qi, min(len(vq), qi + 400)))
            if c > bud and not due:
                break
            if sp is not None:
                kind, j = sp
                if kind == 'force':
                    for l in rare1_code(j, True): A(l)
                else:
                    lab = f'L_r1_{j%4 if R0 <= j-1 < R0+4*RN else j+100}'
                    A(f's_cbranch_vccnz {lab}')
                    A(f'{lab}_ret:')
                    rares[lab] = rare1_code(j, False) + [f's_branch {lab}_ret']
            else:
                A(t)
            bud -= c
            qi += 1
    assert qi == len(vq), (qi, len(vq))
    A.mark(('epi', 0))
    A('s_nop 15')
    for qb in range(2):
        x, y = T + 16, T + 17
        A(f'v_add_f32 v{x}, v{LS(qb,0)}, v{LS(qb,1)}')
        A(f'v_add_f32 v{y}, v{LS(qb,0)}, v{LS(qb,1)}')
        A('s_nop 1')
        A(f'v_permlane32_swap_b32 v{x}, v{y}')
        A('s_nop 1')
        A(f'v_add_f32 v{x}, v{x}, v{y}')
        A(f'v_rcp_f32 v{FS(qb)}, v{x}')
        A('s_nop 0')
        for pc in range(8):
            tb = (pc % 2) * 8 + qb * 64 + (pc // 2) * 16
            for e in range(8): A(f'v_accvgpr_read_b32 v{tb+e}, a{OA(qb, pc//2) + 8*(pc%2) + e}')
            for e in range(8): A(f'v_mul_f32 v{tb+e}, v{tb+e}, v{FS(qb)}')
            for d in range(4): A(f'v_cvt_pk_bf16_f32 v{tb+d}, v{tb+2*d}, v{tb+2*d+1}')
            A(f'buffer_store_dwordx4 v[{tb}:{tb+3}], v{LO}, s[48:51], s47 offen offset:{1024*(pc%4)}')
            if pc == 3: A('s_add_u32 s47, s47, 4096')
        if qb == 0: A(f's_add_u32 s47, s47, {262144-4096}')
    A('L_attn_end:')
    A('s_endpgm')
    ops = resolve_waits(A.ops)
    flat = [o.text for o in ops]
    lines = roll2(ops, NS, R0, RN)
    for lab, code in rares.items():
        lines.append(lab + ':')
        lines += code
    lines.append('L_rare2:')
    lines += rare2_code()
    lines.append('s_setpc_b64 s[60:61]')
    checks = [flat, rare1_code(1, False), rare2_code()]
    return dict(name='attn_kernel', lines=lines, check=checks, grid=256, block=256, lds=163840, vgpr=512, accum=256)

def roll2(ops, NS, R0, RN):
    idx = [i for i, o in enumerate(ops) if o.mark == ('qepi', 0)][0]
    p1, p2 = ops[:idx], ops[idx:]
    err = None
    l1 = None
    for first in range(0, 8):
        n = (NS - 3 - first) // 4
        if n < 2: break
        try:
            l1 = roll(p1, first, 4, n, 'L_attn_qloop', 46); break
        except AssertionError as e:
            err = e
    assert l1 is not None, err
    l2 = roll(p2, 100 + R0, 4, RN, 'L_attn_loop', 46)
    return l1 + l2
```

```python
import sys, math, struct
from fw import *

KA = dict(x=0, kc=8, vc=16, wq=24, wo=32, bx=40, wg=48, wu=56, wd=64, c=72, wmod=80, out=88, dbg=96, ws=104)
WS_MOD = 0
WS_H = 1 << 20
WS_O = 8 << 20
WS_X1 = 24 << 20
WS_H2 = 28 << 20
WS_ACT = 32 << 20
LOG2E = 1.4426950408889634

def f2u(f):
    return struct.unpack('<I', struct.pack('<f', f))[0]

def hx(f):
    return '0x%08x' % f2u(f)

def srd(A, d, p, nbytes, off=0):
    if off:
        A(f's_add_u32 s{d}, s{p}, {off}')
        A(f's_addc_u32 s{d+1}, s{p+1}, 0')
        A(f's_and_b32 s{d+1}, s{d+1}, 0xffff')
    else:
        A(f's_mov_b32 s{d}, s{p}')
        A(f's_and_b32 s{d+1}, s{p+1}, 0xffff')
    A(f's_mov_b32 s{d+2}, {nbytes}')
    A(f's_mov_b32 s{d+3}, 0x20000')

def rbf(A, d, s):
    A(f'v_cvt_pk_bf16_f32 v{d}, 0, v{s}')

def finish(name, S, extra_paths=()):
    ops = resolve_waits(S.ops)
    return ops

def k_mod():
    name = 'mod_kernel'
    A = Stream()
    A('s_cmp_ge_u32 s2, 96')
    A('s_cbranch_scc1 L_mod_end')
    A(f's_load_dwordx2 s[4:5], s[0:1], {KA["c"]}')
    A(f's_load_dwordx2 s[6:7], s[0:1], {KA["wmod"]}')
    A(f's_load_dwordx2 s[8:9], s[0:1], {KA["ws"]}')
    A('v_and_b32 v1, 63, v0')
    A('v_lshrrev_b32 v2, 6, v0')
    A('v_lshrrev_b32 v3, 3, v1')
    A('v_and_b32 v4, 7, v1')
    A('v_lshl_add_u32 v5, v2, 6, v3')
    A('s_movk_i32 s24, 12288')
    A('v_mul_lo_u32 v6, v5, s24')
    A('v_lshl_add_u32 v6, v4, 4, v6')
    A('v_lshlrev_b32 v7, 1, v5')
    A('s_lshl_b32 s25, s2, 7')
    A.wait(lgkm='all')
    srd(A, 12, 4, 2048)
    srd(A, 16, 6, 1024 * 6144 * 2)
    srd(A, 20, 8, 6144 * 4, WS_MOD)
    for i in range(8):
        A(f'buffer_load_ushort v{8+i}, v7, s[12:15], 0 offen offset:{16*i}', tag='c')
    for i in range(8):
        A(f'buffer_load_dwordx4 v[{16+4*i}:{19+4*i}], v6, s[16:19], s25 offen', tag=('w', i))
        if i < 7: A('s_add_u32 s25, s25, 98304')
    A.wait(vm=['c'])
    A(f's_mov_b32 s26, {hx(-LOG2E)}')
    for i in range(8):
        A(f'v_lshlrev_b32 v{8+i}, 16, v{8+i}')
    for i in range(8):
        A(f'v_mul_f32 v{56+i}, s26, v{8+i}')
    for i in range(8):
        A(f'v_exp_f32 v{56+i}, v{56+i}')
    for i in range(8):
        A(f'v_add_f32 v{56+i}, 1.0, v{56+i}')
    for i in range(8):
        A(f'v_rcp_f32 v{56+i}, v{56+i}')
    for i in range(8):
        A(f'v_mul_f32 v{8+i}, v{8+i}, v{56+i}')
    for i in range(8):
        rbf(A, 8 + i, 8 + i)
    for e in range(8):
        A(f'v_mov_b32 v{48+e}, 0')
    A('s_mov_b32 s27, 0xffff0000')
    for i in range(8):
        A.wait(vm=[('w', i)])
        for d in range(4):
            r = 16 + 4 * i + d
            A(f'v_lshlrev_b32 v56, 16, v{r}')
            A(f'v_and_b32 v57, s27, v{r}')
            A(f'v_fmac_f32 v{48+2*d}, v{8+i}, v56')
            A(f'v_fmac_f32 v{49+2*d}, v{8+i}, v57')
    A('v_lshl_add_u32 v58, v2, 3, v3')
    A('v_lshlrev_b32 v58, 8, v58')
    A('v_lshl_add_u32 v58, v4, 5, v58')
    A('ds_write_b128 v58, v[48:51]', tag='w1')
    A('ds_write_b128 v58, v[52:55] offset:16', tag='w1')
    A.wait(lgkm='all')
    A('s_barrier')
    A('v_lshlrev_b32 v59, 11, v2')
    A('v_lshl_add_u32 v59, v1, 2, v59')
    for i in range(8):
        A(f'ds_read_b32 v{16+i}, v59 offset:{256*i}', tag='r1')
    A.wait(lgkm='all')
    for i in range(1, 8):
        A(f'v_add_f32 v16, v16, v{16+i}')
    A('v_lshlrev_b32 v60, 8, v2')
    A('v_lshl_add_u32 v60, v1, 2, v60')
    A('ds_write_b32 v60, v16 offset:32768', tag='w2')
    A.wait(lgkm='all')
    A('s_barrier')
    A('v_readfirstlane_b32 s28, v2')
    A('s_cmp_lg_u32 s28, 0')
    A('s_cbranch_scc1 L_mod_end')
    A('v_lshlrev_b32 v61, 2, v1')
    for i in range(16):
        A(f'ds_read_b32 v{16+i}, v61 offset:{32768+256*i}', tag='r2')
    A.wait(lgkm='all')
    for i in range(1, 16):
        A(f'v_add_f32 v16, v16, v{16+i}')
    rbf(A, 16, 16)
    A('s_lshl_b32 s25, s2, 8')
    A('buffer_store_dword v16, v61, s[20:23], s25 offen')
    A('L_mod_end:')
    A('s_endpgm')
    ops = resolve_waits(A.ops)
    lines = [o.text for o in ops]
    return dict(name=name, lines=lines, check=[lines], grid=96, block=1024, lds=32768 + 4096, vgpr=64, accum=64)

def k_ln(name, src_rowmajor, shift_vec, scale_vec, dst_off):
    A = Stream()
    A('s_cmp_ge_u32 s2, 256')
    A(f's_cbranch_scc1 L_{name}_end')
    A(f's_load_dwordx2 s[4:5], s[0:1], {KA["x"]}')
    A(f's_load_dwordx2 s[8:9], s[0:1], {KA["ws"]}')
    A('v_and_b32 v1, 63, v0')
    A('v_lshrrev_b32 v2, 6, v0')
    A('v_and_b32 v3, 7, v1')
    A('v_lshrrev_b32 v4, 3, v1')
    A('s_lshr_b32 s24, s2, 2')
    A('s_lshl_b32 s24, s24, 16')
    A('s_and_b32 s25, s2, 3')
    A('s_lshl_b32 s25, s25, 7')
    A('s_add_u32 s24, s24, s25')
    A('v_lshrrev_b32 v6, 1, v4')
    A('v_lshl_add_u32 v6, v2, 4, v6')
    A('v_lshlrev_b32 v5, 10, v6')
    A('v_and_b32 v6, 1, v4')
    A('v_lshl_add_u32 v5, v6, 9, v5')
    A('v_lshl_add_u32 v5, v3, 4, v5')
    A('v_add_u32 v5, s24, v5')
    A('v_lshl_add_u32 v7, v2, 5, v4')
    A('v_lshlrev_b32 v8, 5, v7')
    if src_rowmajor:
        A('s_lshl_b32 s26, s2, 14')
        A('v_lshlrev_b32 v9, 11, v3')
        A('v_lshl_add_u32 v9, v7, 4, v9')
        A('v_add_u32 v9, s26, v9')
    A('s_movk_i32 s29, 4096')
    A('s_movk_i32 s30, 8192')
    A('s_movk_i32 s31, 12288')
    soff = ['0', 's29', 's30', 's31']
    A.wait(lgkm='all')
    if src_rowmajor:
        srd(A, 12, 4, 2048 * 1024 * 2)
    else:
        srd(A, 12, 8, 2048 * 1024 * 2, WS_X1)
    srd(A, 16, 8, 6144 * 4, WS_MOD)
    srd(A, 20, 8, 2048 * 1024 * 2, dst_off)
    X = 16
    for i in range(4):
        if src_rowmajor:
            A(f'buffer_load_dwordx4 v[{X+4*i}:{X+4*i+3}], v9, s[12:15], 0 offen offset:{128*i}', tag='x')
        else:
            A(f'buffer_load_dwordx4 v[{X+4*i}:{X+4*i+3}], v5, s[12:15], {soff[i]} offen', tag='x')
    SC = 64; SH = 96
    A(f's_movk_i32 s27, {scale_vec*4096}')
    A(f's_movk_i32 s28, {shift_vec*4096}')
    for i in range(4):
        for hh in range(2):
            A(f'buffer_load_dwordx4 v[{SC+8*i+4*hh}:{SC+8*i+4*hh+3}], v8, s[16:19], s27 offen offset:{256*i+16*hh}', tag='m')
            A(f'buffer_load_dwordx4 v[{SH+8*i+4*hh}:{SH+8*i+4*hh+3}], v8, s[16:19], s28 offen offset:{256*i+16*hh}', tag='m')
    A('s_mov_b32 s32, 0xffff0000')
    A('v_lshl_add_u32 v10, v2, 3, v4')
    A('v_lshlrev_b32 v10, 2, v10')
    A('v_lshl_add_u32 v10, v3, 7, v10')
    A('v_lshlrev_b32 v11, 7, v3')
    A.wait(vm=['x'])
    F = 32
    for d in range(16):
        A(f'v_lshlrev_b32 v{F+2*d}, 16, v{X+d}')
        A(f'v_and_b32 v{F+2*d+1}, s32, v{X+d}')
    def tree(dst, regs, tmp):
        A(f'v_add_f32 v{tmp}, v{regs[0]}, v{regs[4]}')
        A(f'v_add_f32 v{tmp+1}, v{regs[1]}, v{regs[5]}')
        A(f'v_add_f32 v{tmp+2}, v{regs[2]}, v{regs[6]}')
        A(f'v_add_f32 v{tmp+3}, v{regs[3]}, v{regs[7]}')
        for i in range(8, len(regs)):
            A(f'v_add_f32 v{tmp+i%4}, v{tmp+i%4}, v{regs[i]}')
        A(f'v_add_f32 v{tmp}, v{tmp}, v{tmp+1}')
        A(f'v_add_f32 v{tmp+2}, v{tmp+2}, v{tmp+3}')
        A(f'v_add_f32 v{dst}, v{tmp}, v{tmp+2}')
    def wgreduce(reg, ldsoff):
        A(f'ds_write_b32 v10, v{reg} offset:{ldsoff}')
        A.wait(lgkm='all')
        A('s_barrier')
        for i in range(8):
            A(f'ds_read_b128 v[{128+4*i}:{131+4*i}], v11 offset:{ldsoff+16*i}')
        A.wait(lgkm='all')
        tree(reg, list(range(128, 160)), 12)
    tree(160, list(range(F, F + 32)), 12)
    wgreduce(160, 0)
    A(f'v_mul_f32 v160, {hx(1.0/1024)}, v160')
    for e in range(4):
        A(f'v_sub_f32 v{16+e}, v{F+e}, v160')
        A(f'v_mul_f32 v{12+e}, v{16+e}, v{16+e}')
    for e in range(4, 32):
        A(f'v_sub_f32 v{16+e%4}, v{F+e}, v160')
        A(f'v_fmac_f32 v{12+e%4}, v{16+e%4}, v{16+e%4}')
    A('v_add_f32 v12, v12, v13')
    A('v_add_f32 v14, v14, v15')
    A('v_add_f32 v161, v12, v14')
    wgreduce(161, 1024)
    A(f'v_mul_f32 v161, {hx(1.0/1024)}, v161')
    rbf(A, 161, 161)
    A(f'v_add_f32 v161, {hx(1e-5)}, v161')
    rbf(A, 161, 161)
    A('v_sqrt_f32 v161, v161')
    rbf(A, 160, 160)
    rbf(A, 161, 161)
    A('v_rcp_f32 v161, v161')
    A.wait(vm=['m'])
    for e in range(32):
        A(f'v_add_f32 v{SC+e}, 1.0, v{SC+e}')
    for e in range(32):
        rbf(A, SC + e, SC + e)
    for e in range(32):
        A(f'v_sub_f32 v{F+e}, v{F+e}, v160')
    for e in range(32):
        rbf(A, F + e, F + e)
    for e in range(32):
        A(f'v_mul_f32 v{F+e}, v{F+e}, v161')
    for e in range(32):
        rbf(A, F + e, F + e)
    for e in range(32):
        A(f'v_mul_f32 v{F+e}, v{F+e}, v{SC+e}')
    for e in range(32):
        rbf(A, F + e, F + e)
    for e in range(32):
        A(f'v_add_f32 v{F+e}, v{F+e}, v{SH+e}')
    for d in range(16):
        A(f'v_cvt_pk_bf16_f32 v{X+d}, v{F+2*d}, v{F+2*d+1}')
    for i in range(4):
        A(f'buffer_store_dwordx4 v[{X+4*i}:{X+4*i+3}], v5, s[20:23], {soff[i]} offen')
    A(f'L_{name}_end:')
    A('s_endpgm')
    ops = resolve_waits(A.ops)
    lines = [o.text for o in ops]
    return dict(name=name + '_kernel', lines=lines, check=[lines], grid=256, block=256, lds=2048, vgpr=168, accum=168)

def try_roll(ops, nst, period, tail, label, creg):
    err = None
    for first in range(0, nst):
        n = (nst - tail - first) // period
        if n < 2: break
        try:
            return roll(ops, first, period, n, label, creg)
        except AssertionError as e:
            err = e
    raise AssertionError('could not roll: %s' % err)

PI = [0, 2, 1, 3]

def lane_decode_tr(A, lane, t0):
    A(f'v_lshrrev_b32 v{t0}, 5, v{lane}')
    A(f'v_bfe_u32 v{t0+1}, v{lane}, 4, 1')
    A(f'v_bfe_u32 v{t0+2}, v{lane}, 2, 2')
    A(f'v_and_b32 v{t0+3}, 1, v{lane}')
    A(f'v_lshlrev_b32 v{t0+3}, 4, v{t0+3}')
    A(f'v_bfe_u32 v{t0+4}, v{lane}, 1, 1')
    A(f'v_lshl_add_u32 v{t0+3}, v{t0+4}, 3, v{t0+3}')

def k_gemm_n1024(name, Ktot, tok_off, wkey, gvec, res_rowmajor, out_rowmajor, out_off):
    KS = 4; NS = Ktot // 64; S = 8; RA = 4; RB = 16
    nsteps = Ktot // 16
    blk_bytes = nsteps * 1024
    A = Stream()
    A('s_cmp_ge_u32 s2, 256')
    A(f's_cbranch_scc1 L_{name}_end')
    A(f's_load_dwordx2 s[4:5], s[0:1], {KA[wkey]}')
    A(f's_load_dwordx2 s[6:7], s[0:1], {KA["x"] if res_rowmajor else KA["out"]}')
    A(f's_load_dwordx2 s[8:9], s[0:1], {KA["ws"]}')
    A('v_and_b32 v1, 63, v0')
    A('v_lshrrev_b32 v2, 6, v0')
    A('v_lshlrev_b32 v3, 4, v1')
    A('v_readfirstlane_b32 s33, v2')
    A('s_and_b32 s30, s2, 7'); A('s_lshr_b32 s31, s2, 3')
    A('s_lshr_b32 s34, s30, 1'); A('s_lshl_b32 s34, s34, 2'); A('s_and_b32 s36, s31, 3'); A('s_add_u32 s34, s34, s36')
    A('s_and_b32 s35, s30, 1'); A('s_lshl_b32 s35, s35, 3'); A('s_lshr_b32 s36, s31, 2'); A('s_add_u32 s35, s35, s36')
    A('s_lshl_b32 s37, s34, 2'); A('s_add_u32 s37, s37, s33')
    A(f's_mul_i32 s40, s37, {blk_bytes}')
    A('v_lshrrev_b32 v6, 3, v1'); A('v_lshlrev_b32 v4, 11, v6')
    A('v_bfe_u32 v6, v1, 4, 1'); A('v_lshlrev_b32 v6, 2, v6'); A('v_and_b32 v7, 7, v1'); A('v_xor_b32 v6, v6, v7')
    A('v_lshl_add_u32 v4, v6, 4, v4')
    A(f'v_add_u32 v5, {16384-1024}, v4')
    A('s_lshl_b32 s41, s35, 7'); A('s_lshl_b32 s36, s33, 15'); A('s_add_u32 s41, s41, s36')
    A('s_lshl_b32 s42, s33, 11')
    lane_decode_tr(A, 1, 10)
    A('v_lshl_add_u32 v15, v10, 3, v12')
    A('v_lshlrev_b32 v15, 7, v15')
    A('v_lshl_add_u32 v15, v11, 5, v15')
    A('v_add_u32 v15, v15, v13')
    A('v_lshrrev_b32 v14, 1, v12')
    A('v_lshl_add_u32 v8, v14, 6, v15')
    A('v_xor_b32 v14, 1, v14')
    A('v_lshl_add_u32 v9, v14, 6, v15')
    A('s_lshl_b32 s43, s37, 16'); A('s_lshl_b32 s36, s35, 12'); A('s_add_u32 s43, s43, s36')
    A('v_and_b32 v16, 31, v1'); A('v_lshlrev_b32 v16, 11, v16'); A('v_lshl_add_u32 v16, v10, 4, v16')
    A('s_lshl_b32 s44, s37, 16'); A('s_lshl_b32 s36, s35, 7'); A('s_add_u32 s44, s44, s36')
    A('v_lshlrev_b32 v17, 5, v10')
    A('s_lshl_b32 s45, s35, 8'); A(f's_add_u32 s45, s45, {gvec*4096}')
    A.wait(lgkm='all')
    srd(A, 12, 4, Ktot * 1024 * 2)
    srd(A, 16, 8, 64 * blk_bytes, tok_off)
    srd(A, 20, 8, 6144 * 4, WS_MOD)
    if res_rowmajor:
        srd(A, 24, 6, 2048 * 1024 * 2)
        srd(A, 48, 8, 2048 * 1024 * 2, out_off)
    else:
        srd(A, 24, 8, 2048 * 1024 * 2, WS_X1)
        srd(A, 48, 6, 2048 * 1024 * 2)
    ACC = 32; RES = 64; G = 80
    AF = 0; BF = 64
    def tokload(gs):
        r = BF + (gs % RB) * 4
        A(f'buffer_load_dwordx4 a[{r}:{r+3}], v3, s[16:19], s40 offen offset:{(gs%4)*1024}', tag=('tok', gs))
        if gs % 4 == 3: A('s_add_u32 s40, s40, 4096')
    def dma(st):
        A(f's_add_u32 m0, s42, {(st % S) * 8192}')
        A('s_nop 0')
        A('buffer_load_dwordx4 v4, s[12:15], s41 offen lds', tag=('dma', st))
        A('buffer_load_dwordx4 v5, s[12:15], s41 offen offset:1024 lds', tag=('dma', st))
        A('s_add_u32 s41, s41, 131072')
    def aread(gs, t):
        st = gs // KS; s = gs % KS
        r = AF + ((gs % RA) * 2 + t) * 4
        for j in range(2):
            off = (st % S) * 8192 + (16 * s + 4 * j) * 128
            A(f'ds_read_b64_tr_b16 a[{r+2*j}:{r+2*j+1}], v{8+t} offset:{off}', tag=('a', gs, t))
    for st in range(S - 1):
        dma(st)
        if st < RB // KS:
            for s in range(KS): tokload(st * KS + s)
    for p in range(4):
        if res_rowmajor:
            A(f'buffer_load_dwordx4 v[{RES+4*p}:{RES+4*p+3}], v16, s[24:27], s44 offen offset:{32*p}', tag='res')
        else:
            A(f'buffer_load_dwordx4 v[{RES+4*p}:{RES+4*p+3}], v3, s[24:27], s43 offen offset:{1024*p}', tag='res')
        for hh in range(2):
            A(f'buffer_load_dwordx4 v[{G+8*p+4*hh}:{G+8*p+4*hh+3}], v17, s[20:23], s45 offen offset:{64*p+16*hh}', tag='res')
    for e in range(32):
        A(f'v_mov_b32 v{ACC+e}, 0')
    A.wait(vm=[('dma', 0)])
    A('s_barrier')
    for gs in range(RA):
        for t in range(2): aread(gs, t)
    for st in range(NS):
        A.mark(('st', st))
        if st + 1 < NS:
            A.wait(vm=[('dma', st + 1)])
            A('s_barrier')
        for s in range(KS):
            gs = st * KS + s
            for t in range(2):
                A.wait(vm=[('tok', gs)], lgkm=[('a', gs, t)])
                ra = AF + ((gs % RA) * 2 + t) * 4
                rb = BF + (gs % RB) * 4
                A(f'v_mfma_f32_32x32x16_bf16 v[{ACC+16*t}:{ACC+16*t+15}], a[{ra}:{ra+3}], a[{rb}:{rb+3}], v[{ACC+16*t}:{ACC+16*t+15}]')
                if gs + RA < nsteps: aread(gs + RA, t)
                if t == 1 and gs + RB < nsteps: tokload(gs + RB)
                if t == 0 and s == 0 and st + S - 1 < NS: dma(st + S - 1)
    A.mark(('epi', 0))
    A.wait(vm='all')
    A('s_nop 15')
    A('s_mov_b32 s32, 0xffff0000')
    for p in range(4):
        for e in range(8):
            a = ACC + 8 * p + e
            rbf(A, a, a)
        for e in range(8):
            a = ACC + 8 * p + e
            A(f'v_mul_f32 v{a}, v{G+8*p+e}, v{a}')
        for e in range(8):
            a = ACC + 8 * p + e
            rbf(A, a, a)
        for d in range(4):
            A(f'v_lshlrev_b32 v{G+8*p+2*d}, 16, v{RES+4*p+d}')
            A(f'v_and_b32 v{G+8*p+2*d+1}, s32, v{RES+4*p+d}')
        for e in range(8):
            a = ACC + 8 * p + e
            A(f'v_add_f32 v{a}, v{G+8*p+e}, v{a}')
        for d in range(4):
            A(f'v_cvt_pk_bf16_f32 v{RES+4*p+d}, v{ACC+8*p+2*d}, v{ACC+8*p+2*d+1}')
        if out_rowmajor:
            A(f'buffer_store_dwordx4 v[{RES+4*p}:{RES+4*p+3}], v16, s[48:51], s44 offen offset:{32*p}')
        else:
            A(f'buffer_store_dwordx4 v[{RES+4*p}:{RES+4*p+3}], v3, s[48:51], s43 offen offset:{1024*p}')
    A(f'L_{name}_end:')
    A('s_endpgm')
    ops = resolve_waits(A.ops)
    flat = [o.text for o in ops]
    lines = try_roll(ops, NS, S, S, f'L_{name}_loop', 46)
    return dict(name=name + '_kernel', lines=lines, check=[flat], grid=256, block=256, lds=S * 8192, vgpr=256, accum=128)

def k_gateup():
    name = 'gateup'
    Ktot = 1024; KS = 4; NS = 16; S = 4; RB = 8; NT = 7; TB = 2
    nsteps = 64; blk_bytes = 65536
    UPOFF = 14464; SLOT = 28800
    A = Stream()
    A('s_cmp_ge_u32 s2, 256')
    A(f's_cbranch_scc1 L_{name}_end')
    A(f's_load_dwordx2 s[4:5], s[0:1], {KA["wg"]}')
    A(f's_load_dwordx2 s[6:7], s[0:1], {KA["wu"]}')
    A(f's_load_dwordx2 s[8:9], s[0:1], {KA["ws"]}')
    V = 224
    L = V; LO = V + 1; TA = V + 2; TA2 = V + 3; DM = V + 4
    T = V + 12
    A(f'v_and_b32 v{L}, 63, v0')
    A(f'v_lshrrev_b32 v{T}, 6, v0')
    A(f'v_lshlrev_b32 v{LO}, 4, v{L}')
    A(f'v_readfirstlane_b32 s33, v{T}')
    A('s_and_b32 s30, s2, 7'); A('s_lshr_b32 s31, s2, 3')
    A('s_and_b32 s34, s30, 1'); A('s_lshl_b32 s34, s34, 2'); A('s_and_b32 s36, s31, 3'); A('s_add_u32 s34, s34, s36')
    A('s_lshr_b32 s35, s30, 1'); A('s_lshl_b32 s35, s35, 3'); A('s_lshr_b32 s36, s31, 2'); A('s_add_u32 s35, s35, s36')
    A('s_lshl_b32 s37, s34, 3'); A('s_lshl_b32 s36, s33, 1'); A('s_add_u32 s37, s37, s36')
    A('s_lshl_b32 s40, s37, 16')
    A('s_add_u32 s41, s40, 65536')
    A('s_movk_i32 s36, 4682'); A('s_movk_i32 s38, 7168')
    for i in range(7):
        A(f'v_add_u32 v{T}, {64*i}, v{L}')
        A(f'v_mul_lo_u32 v{T+1}, v{T}, s36')
        A(f'v_lshrrev_b32 v{T+1}, 16, v{T+1}')
        A(f'v_mul_u32_u24 v{T+2}, 14, v{T+1}')
        A(f'v_sub_u32 v{T+2}, v{T}, v{T+2}')
        A(f'v_mul_lo_u32 v{T+1}, v{T+1}, s38')
        A(f'v_lshl_add_u32 v{DM+i}, v{T+2}, 4, v{T+1}')
        if i % 4: A(f'v_subrev_u32 v{DM+i}, {1024*(i%4)}, v{DM+i}')
    A('s_mul_i32 s42, s35, 224'); A('s_and_b32 s36, s33, 1'); A(f's_mul_i32 s39, s36, {32*7168}'); A('s_add_u32 s42, s42, s39')
    A(f's_mul_i32 s43, s36, 7168'); A('s_lshr_b32 s36, s33, 1'); A(f's_mul_i32 s39, s36, {UPOFF}'); A('s_add_u32 s43, s43, s39')
    lane_decode_tr(A, L, T)
    A(f'v_lshl_add_u32 v{T+5}, v{T}, 3, v{T+2}')
    A(f'v_mul_u32_u24 v{T+5}, 224, v{T+5}')
    A(f'v_mul_u32_u24 v{T+6}, {UPOFF}, v{T+1}')
    A(f'v_add3_u32 v{TA}, v{T+5}, v{T+6}, v{T+3}')
    A(f'v_add_u32 v{TA2}, {2*SLOT}, v{TA}')
    A(f's_mul_i32 s44, s37, {224*1024}'); A(f's_mul_i32 s39, s35, {7*1024}'); A('s_add_u32 s44, s44, s39')
    A.wait(lgkm='all')
    A('s_cmp_eq_u32 s36, 0')
    A('s_cselect_b32 s4, s4, s6')
    A('s_cselect_b32 s5, s5, s7')
    srd(A, 12, 4, 1024 * 3584 * 2)
    srd(A, 16, 8, 2048 * 1024 * 2, WS_H2)
    srd(A, 20, 8, 2048 * 3584 * 2, WS_ACT)
    AF = 0; BF = 32
    def tokload(gs, b):
        r = BF + ((gs % RB) * 2 + b) * 4
        A(f'buffer_load_dwordx4 a[{r}:{r+3}], v{LO}, s[16:19], s{40+b} offen offset:{(gs%4)*1024}', tag=('tok', gs))
        if gs % 4 == 3: A(f's_add_u32 s{40+b}, s{40+b}, 4096')
    def dma(st, i):
        if i % 4 == 0:
            A(f's_add_u32 m0, s43, {(st % S) * SLOT + 1024 * i}')
            A('s_nop 0')
        A(f'buffer_load_dwordx4 v{DM+i}, s[12:15], s42 offen offset:{1024*(i%4)} lds', tag=('dma', st))
        if i == 6: A(f's_add_u32 s42, s42, {64*7168}')
    def aread(gs, t, j):
        st = gs // KS; s = gs % KS
        sl = st % S
        base = TA if sl < 2 else TA2
        off = (sl % 2) * SLOT + (16 * s + 4 * j) * 224 + 32 * t
        r = AF + 4 * t + 2 * j
        A(f'ds_read_b64_tr_b16 a[{r}:{r+1}], v{base} offset:{off}', tag=('a', gs, t))
    for st in range(S - 1):
        for i in range(7): dma(st, i)
        if st < RB // KS:
            for s in range(KS):
                for b in range(2): tokload(st * KS + s, b)
    for e in range(224):
        A(f'v_mov_b32 v{e}, 0')
    A.wait(vm=[('dma', 0)])
    A('s_barrier')
    for t in range(NT):
        for j in range(2):
            if not (t == NT - 1 and j == 1): aread(0, t, j)
    for st in range(NS):
        A.mark(('st', st))
        for s in range(KS):
            gs = st * KS + s
            for t in range(NT):
                for b in range(TB):
                    if b == 0:
                        A.wait(vm=[('tok', gs)] if t == 0 else None, lgkm=[('a', gs, t)])
                    acc = (b * NT + t) * 16
                    rb = BF + ((gs % RB) * 2 + b) * 4
                    A(f'v_mfma_f32_32x32x16_bf16 v[{acc}:{acc+15}], a[{AF+4*t}:{AF+4*t+3}], a[{rb}:{rb+3}], v[{acc}:{acc+15}]')
                    if t == 0 and b == 0:
                        aread(gs, NT - 1, 1)
                        if s == KS - 1 and st + 1 < NS:
                            pass
                    elif b == 0:
                        if gs + 1 < nsteps: aread(gs + 1, t - 1, 1)
                    else:
                        if t == 0 and s == KS - 1 and st + 1 < NS:
                            A.wait(vm=[('dma', st + 1)])
                            A('s_barrier')
                        if gs + 1 < nsteps: aread(gs + 1, t, 0)
                    if t == 1 and gs >= 1 and gs - 1 + RB < nsteps: tokload(gs - 1 + RB, b)
                    dst = None
                    if b == 1 and t in (2, 4) and s < 3 and st + S - 2 < NS and st >= 1:
                        dma(st + S - 2, s * 2 + (t - 2) // 2)
                    if b == 1 and t == 2 and s == 3 and st + S - 2 < NS and st >= 1:
                        dma(st + S - 2, 6)
    A.mark(('epi', 0))
    A('s_nop 15')
    k0 = -2.0 * math.sqrt(2.0 / math.pi) * LOG2E
    k1 = k0 * 0.044715
    A(f's_mov_b32 s50, {hx(k0)}'); A(f's_mov_b32 s51, {hx(k1)}')
    A(f'v_mov_b32 v{T+10}, s50')
    for b in range(TB):
        for t in range(NT):
            acc = (b * NT + t) * 16
            g = [acc + e for e in range(8)]; u = [acc + 8 + e for e in range(8)]
            tm = [T + e for e in range(8)]
            for e in range(8): rbf(A, g[e], g[e])
            for e in range(8): A(f'v_mul_f32 v{tm[e]}, v{g[e]}, v{g[e]}')
            for e in range(8): A(f'v_fma_f32 v{tm[e]}, v{tm[e]}, s51, v{T+10}')
            for e in range(8): A(f'v_mul_f32 v{tm[e]}, v{tm[e]}, v{g[e]}')
            for e in range(8): A(f'v_exp_f32 v{tm[e]}, v{tm[e]}')
            for e in range(8): A(f'v_add_f32 v{tm[e]}, 1.0, v{tm[e]}')
            for e in range(8): A(f'v_rcp_f32 v{tm[e]}, v{tm[e]}')
            for e in range(8): rbf(A, u[e], u[e])
            for e in range(8): A(f'v_mul_f32 v{g[e]}, v{g[e]}, v{tm[e]}')
            for e in range(8): rbf(A, g[e], g[e])
            for e in range(8): A(f'v_mul_f32 v{g[e]}, v{g[e]}, v{u[e]}')
            for d in range(4): A(f'v_cvt_pk_bf16_f32 v{u[d]}, v{g[2*d]}, v{g[2*d+1]}')
            A(f'buffer_store_dwordx4 v[{u[0]}:{u[3]}], v{LO}, s[20:23], s44 offen offset:{1024*(t%4)}')
            if t == 3: A('s_add_u32 s44, s44, 4096')
        if b == 0: A(f's_add_u32 s44, s44, {224*1024-4096}')
    A(f'L_{name}_end:')
    A('s_endpgm')
    ops = resolve_waits(A.ops)
    flat = [o.text for o in ops]
    lines = try_roll(ops, NS, S, 2, f'L_{name}_loop', 46)
    return dict(name=name + '_kernel', lines=lines, check=[flat], grid=256, block=256, lds=S * SLOT, vgpr=512, accum=256)

from gen_attn import k_attn

def build(kernels, path):
    hdr = open('adaLN_cond__mha_block_cached__geglu_ffn__prompt.s.ref').read().split('\n')
    out = []
    for l in hdr:
        if l.startswith('; Override') or l.startswith('; grid=') or '@launch' in l: continue
        if not l.startswith(';'): break
        out.append(l)
    for k in kernels:
        out.append(f"; @launch kernel={k['name']} grid=({k['grid']},1,1) block=({k['block']},1,1) lds={k['lds']}")
    out.append('.amdgcn_target "amdgcn-amd-amdhsa--gfx950"')
    seen = []
    nprob = 0
    for k in kernels:
        if k['name'] in seen: continue
        seen.append(k['name'])
        out += kernel_text(k['name'], k['lines'])
        for c in k['check']:
            pr = check_hazards(c, k['name'])
            for p in pr[:20]: print('HAZARD', p)
            nprob += len(pr)
    out.append('.section .rodata,"a"')
    seen = []
    for k in kernels:
        if k['name'] in seen: continue
        seen.append(k['name'])
        out += kernel_desc(k['name'], vgpr=k['vgpr'], sgpr=k.get('sgpr', 96), accum=k['accum'])
    open(path, 'w').write('\n'.join(out) + '\n')
    print('wrote', path, 'lines', len(out), 'hazards', nprob)

if __name__ == '__main__':
    import argparse
    ap = argparse.ArgumentParser()
    ap.add_argument('-o', default='adaLN_cond__mha_block_cached__geglu_ffn__prompt.s')
    ap.add_argument('--mode', default='pre')
    args = ap.parse_args()
    ks = [k_mod(),
          k_ln('lna', True, 0, 1, WS_H),
          k_attn(args.mode),
          k_gemm_n1024('oproj', 4096, WS_O, 'wo', 2, True, False, WS_X1),
          k_ln('lnb', False, 3, 4, WS_H2),
          k_gateup(),
          k_gemm_n1024('down', 3584, WS_ACT, 'wd', 5, False, True, 0)]
    build(ks, args.o)
```

```python
import sys
def gen(name, blk_stride, share='xcd', depth=8, nstages=64, lds=131072, nwg=256, dma=False, rot=0, fl=''):
    L = []
    A = L.append
    A(f"; @launch kernel={name}_kernel grid=({nwg},1,1) block=(256,1,1) lds={lds}")
    A('.amdgcn_target "amdgcn-amd-amdhsa--gfx950"')
    A('.text')
    A(f'.globl {name}_kernel')
    A('.p2align 8')
    A(f'.type {name}_kernel,@function')
    A(f'{name}_kernel:')
    A('s_load_dwordx2 s[4:5], s[0:1], 0')
    A('s_load_dwordx2 s[6:7], s[0:1], 8')
    A('s_waitcnt lgkmcnt(0)')
    A('s_mov_b32 s8, s4'); A('s_and_b32 s9, s5, 0xffff'); A('s_mov_b32 s10, 0x10000000'); A('s_mov_b32 s11, 0x20000')
    A('s_mov_b32 s12, s6'); A('s_and_b32 s13, s7, 0xffff'); A('s_mov_b32 s14, 0x400000'); A('s_mov_b32 s15, 0x20000')
    A('v_and_b32 v1, 63, v0')
    A('v_lshlrev_b32 v2, 4, v1')
    A('v_lshrrev_b32 v3, 6, v0')
    A('s_nop 0')
    A('v_readfirstlane_b32 s16, v3')
    if share == 'xcd':
        A('s_and_b32 s30, s2, 7'); A('s_lshr_b32 s31, s2, 3')
        A('s_lshr_b32 s32, s30, 1'); A('s_lshl_b32 s32, s32, 2'); A('s_and_b32 s33, s31, 3'); A('s_add_u32 s32, s32, s33')
    elif share == 'xcd1':
        A('s_and_b32 s30, s2, 7'); A('s_lshr_b32 s31, s2, 3')
        A('s_lshl_b32 s32, s30, 2'); A('s_and_b32 s33, s31, 3'); A('s_add_u32 s32, s32, s33')
    else:
        A('s_mov_b32 s32, s2')
    A('s_lshl_b32 s18, s32, 2'); A('s_add_u32 s18, s18, s16'); A(f's_mul_i32 s18, s18, {blk_stride}')
    A('s_lshl_b32 s17, s16, 14')
    A('s_mov_b32 s20, 0')
    A('s_barrier')
    A('s_memtime s[22:23]')
    A('s_memrealtime s[36:37]')
    A('s_waitcnt lgkmcnt(0)')
    A('.p2align 6')
    A('L_loop:')
    U = 4
    for u in range(U):
        if dma:
            A(f's_add_u32 m0, s17, {u*4096}')
            A('s_nop 0')
        for i in range(4):
            r = 16 + ((u * 4 + i) % 48) * 4
            if dma:
                A(f'buffer_load_dwordx4 v2, s[8:11], s18 offen offset:{i*1024} {fl} lds')
            else:
                A(f'buffer_load_dwordx4 v[{r}:{r+3}], v2, s[8:11], s18 offen offset:{i*1024} {fl}')
        A('s_add_u32 s18, s18, 4096')
        A(f's_waitcnt vmcnt({min(63, 4*depth)})')
    A('s_add_u32 s20, s20, 1')
    A(f's_cmp_lt_u32 s20, {nstages // U}')
    A('s_cbranch_scc1 L_loop')
    A('s_waitcnt vmcnt(0) lgkmcnt(0)')
    A('s_memtime s[24:25]')
    A('s_memrealtime s[38:39]')
    A('s_waitcnt lgkmcnt(0)')
    A('s_sub_u32 s26, s24, s22')
    A('s_sub_u32 s29, s38, s36')
    A('v_mov_b32 v5, s26')
    A('v_mov_b32 v7, s29')
    A('s_lshl_b32 s27, s2, 6')
    A('s_lshl_b32 s28, s16, 2')
    A('s_add_u32 s27, s27, s28')
    A('v_mov_b32 v6, s27')
    A('v_cmp_eq_u32 vcc, 0, v1')
    A('s_and_saveexec_b64 s[30:31], vcc')
    A('buffer_store_dword v5, v6, s[12:15], 0 offen')
    A('buffer_store_dword v7, v6, s[12:15], 0 offen offset:16')
    A('s_waitcnt vmcnt(0)')
    A('s_endpgm')
    A('.section .rodata,"a"')
    A('.p2align 6')
    A(f'.amdhsa_kernel {name}_kernel')
    A('.amdhsa_next_free_vgpr 512'); A('.amdhsa_next_free_sgpr 64'); A('.amdhsa_accum_offset 256')
    A('.amdhsa_group_segment_fixed_size 0'); A('.amdhsa_kernarg_size 32'); A('.amdhsa_user_sgpr_count 2')
    A('.amdhsa_user_sgpr_kernarg_segment_ptr 1'); A('.amdhsa_system_sgpr_workgroup_id_x 1')
    A('.end_amdhsa_kernel')
    open(f'{name}.s', 'w').write('\n'.join(L) + '\n')
names = []
def g(n, *a, **k):
    gen(n, *a, **k); names.append(n)

for fl in ('', 'nt', 'sc1', 'sc0 sc1', 'sc0 nt sc1'):
    nm = fl.replace(' ', '')
    g(f'mb4_x1_{nm}_d2', 262144, share='xcd1', depth=2, fl=fl)
    g(f'mb4_x1_{nm}_d11', 262144, share='xcd1', depth=11, fl=fl)
    g(f'mb4_x1_{nm}_dma15', 262144, share='xcd1', depth=15, fl=fl, dma=True)
print(' '.join(names))
```

```python
import re, subprocess, sys
import mb4b
def pf_kernel(name, stride, fl, nwg=256, total=32<<20, waitend=True):
    L = []
    A = L.append
    per_wg = total // nwg
    per_wave = per_wg // 4
    n = per_wave // (64 * stride)
    A('.text'); A(f'.globl {name}'); A('.p2align 8'); A(f'.type {name},@function'); A(f'{name}:')
    A('s_load_dwordx2 s[4:5], s[0:1], 0')
    A('s_load_dwordx2 s[6:7], s[0:1], 8')
    A('s_waitcnt lgkmcnt(0)')
    A('s_mov_b32 s8, s4'); A('s_and_b32 s9, s5, 0xffff'); A('s_mov_b32 s10, 0x10000000'); A('s_mov_b32 s11, 0x20000')
    A('s_mov_b32 s12, s6'); A('s_and_b32 s13, s7, 0xffff'); A('s_mov_b32 s14, 0x400000'); A('s_mov_b32 s15, 0x20000')
    A('v_and_b32 v1, 63, v0'); A('v_lshrrev_b32 v3, 6, v0'); A('s_nop 0'); A('v_readfirstlane_b32 s16, v3')
    A(f's_movk_i32 s17, {stride}')
    A('v_mul_lo_u32 v2, v1, s17')
    A(f's_mul_i32 s18, s2, {per_wg}'); A(f's_mul_i32 s19, s16, {per_wave}'); A('s_add_u32 s18, s18, s19')
    A('s_memrealtime s[36:37]')
    for i in range(n):
        A(f'buffer_load_dword v{8+i%32}, v2, s[8:11], s18 offen {fl}')
        A(f's_add_u32 s18, s18, {64*stride}')
    if waitend:
        A('s_waitcnt vmcnt(0)')
    A('s_memrealtime s[38:39]')
    A('s_waitcnt lgkmcnt(0)')
    A('s_sub_u32 s29, s38, s36')
    A('v_mov_b32 v7, s29')
    A('s_lshl_b32 s27, s2, 6'); A('s_lshl_b32 s28, s16, 2'); A('s_add_u32 s27, s27, s28'); A('v_mov_b32 v6, s27')
    A('v_cmp_eq_u32 vcc, 0, v1'); A('s_and_saveexec_b64 s[30:31], vcc')
    A('buffer_store_dword v7, v6, s[12:15], 0 offen offset:32')
    A('s_endpgm')
    D = ['.p2align 6', f'.amdhsa_kernel {name}', '.amdhsa_next_free_vgpr 64', '.amdhsa_next_free_sgpr 64', '.amdhsa_accum_offset 64',
         '.amdhsa_group_segment_fixed_size 0', '.amdhsa_kernarg_size 32', '.amdhsa_user_sgpr_count 2', '.amdhsa_user_sgpr_kernarg_segment_ptr 1',
         '.amdhsa_system_sgpr_workgroup_id_x 1', '.end_amdhsa_kernel']
    return L, D
names = []
base = open('mb4_x1__d2.s').read().split('\n')
for stride in (128, 64, 256):
    for fl in ('', 'sc1'):
        nm = f'mb6_s{stride}{fl}'
        L, D = pf_kernel('pf_kernel', stride, fl)
        out = ['; @launch kernel=pf_kernel grid=(256,1,1) block=(256,1,1) lds=0', base[0], base[1]] + L
        i = base.index('.section .rodata,"a"')
        out += base[2:i + 1] + D + base[i + 1:]
        open(nm + '.s', 'w').write('\n'.join(out))
        names.append(nm)
print(' '.join(names))
```
